```python
import torch

def _softmax(x, axis=-1):
    return torch.softmax(x, dim=axis)
def _gelu(x):
    return torch.nn.functional.gelu(x, approximate="tanh")
def _silu(x):
    return torch.nn.functional.silu(x)
def _sigmoid(x):
    return torch.sigmoid(x)
def _layernorm(x, axis=-1, eps=1e-5):
    m = x.mean(dim=axis, keepdim=True)
    v = x.var(dim=axis, keepdim=True, unbiased=False)
    return (x - m) / torch.sqrt(v + eps)
def _scatter_add(tgt, idx, src, axis=0):
    return tgt.clone().index_add_(axis, idx, src)
def _segment_sum(src, seg, n):
    out = torch.zeros((n,) + src.shape[1:], dtype=src.dtype)
    return out.index_add_(0, seg, src)
def _pad(x, pw):
    flat = tuple(v for pair in reversed(pw) for v in pair)
    return torch.nn.functional.pad(x, flat)

kernel_name = 'standalone__gqa_softmax__near_ridge'

def setup_inputs():

    _w = (lambda a: (lambda t: t.to(torch.bfloat16) if t.is_floating_point() else t)(torch.as_tensor(a)))
    B, Hq, Hkv, Sq, Sk, D = 32, 32, 8, 256, 256, 128
    return {
        "q": _w((lambda *s: torch.randn(*s, dtype=torch.bfloat16) * 0.8)(B, Hq, Sq, D)),
        "k": _w((lambda *s: torch.randn(*s, dtype=torch.bfloat16) * 0.8)(B, Hkv, Sk, D)),
        "v": _w((lambda *s: torch.randn(*s, dtype=torch.bfloat16) * 0.05)(B, Hkv, Sk, D)),
    }

def reference(q, k, v):
    B, Hq, Sq, D = q.shape
    Hkv = k.shape[1]
    rep = Hq // Hkv
    k = (lambda x, n, axis: torch.repeat_interleave(x, n, dim=axis))(k, rep, axis=1)
    v = (lambda x, n, axis: torch.repeat_interleave(x, n, dim=axis))(v, rep, axis=1)
    scale = D ** -0.5
    scores = torch.einsum("bhqd,bhkd->bhqk", q, k) * scale
    p = _softmax(scores, axis=-1)
    return torch.einsum("bhqk,bhkd->bhqd", p, v)
```

```python
import re

def regs_of(tok):
    t = tok.strip()
    t = t.lstrip('-').strip('|')
    if t.startswith('abs(') and t.endswith(')'): t = t[4:-1]
    m = re.fullmatch(r'([vsa])(\d+)', t)
    if m: return m.group(1), [int(m.group(2))]
    m = re.fullmatch(r'([vsa])\[(\d+):(\d+)\]', t)
    if m: return m.group(1), list(range(int(m.group(2)), int(m.group(3)) + 1))
    if t == 'vcc': return 'vcc', [0]
    if t == 'exec': return 'exec', [0]
    if t == 'm0': return 'm0', [0]
    return None, []

TRANS = ('v_exp_f32', 'v_log_f32', 'v_rcp_f32', 'v_rsq_f32', 'v_sqrt_f32', 'v_sin_f32', 'v_cos_f32')

class Ins:
    __slots__ = ('text', 'op', 'kind', 'vw', 'vr', 'sw', 'sr', 'mA', 'mB', 'mC', 'mD', 'passes', 'nops', 'm0w', 'm0r', 'tag')
    def __init__(self, text, tag=None):
        self.text = text
        self.tag = tag
        t = text.split(';')[0].split('//')[0].strip()
        self.vw = set(); self.vr = set(); self.sw = set(); self.sr = set()
        self.mA = self.mB = self.mC = self.mD = None
        self.passes = 0; self.nops = 1; self.m0w = False; self.m0r = False
        if t.endswith(':') or t == '' or t.startswith('.'):
            self.op = 'label' if t.endswith(':') else 'none'; self.kind = 'label'; self.nops = 0
            return
        parts = t.split(None, 1)
        op = parts[0]; self.op = op
        rest = parts[1] if len(parts) > 1 else ''
        ops = [x.strip() for x in rest.split(',')] if rest else []
        if ops:
            last = ops[-1].split()
            ops[-1] = last[0] if last else ''
        def V(tok):
            k, r = regs_of(tok); return set(r) if k == 'v' else set()
        def S(tok):
            k, r = regs_of(tok); return set(r) if k == 's' else set()
        if op.startswith('v_mfma'):
            self.kind = 'mfma'
            self.mD = V(ops[0]); self.mA = V(ops[1]); self.mB = V(ops[2]); self.mC = V(ops[3])
            self.vw = set(self.mD); self.vr = self.mA | self.mB | self.mC
            if '32x32x16' in op: self.passes = 8
            elif '16x16x32' in op: self.passes = 4
            else: raise ValueError(op)
        elif op.startswith('v_'):
            self.kind = 'trans' if op.replace('_e32','').replace('_e64','') in TRANS else 'valu'
            base = op
            if base.startswith('v_permlane') and 'swap' in base:
                self.vw = V(ops[0]) | V(ops[1]); self.vr = set(self.vw); self.kind = 'permlane'
            elif base.startswith('v_readfirstlane') or base.startswith('v_readlane'):
                self.sw = S(ops[0]); self.vr = V(ops[1]); self.kind = 'readlane'
            elif base.startswith('v_cmp'):
                self.sw = S(ops[0])
                for o in ops[1:]: self.vr |= V(o); self.sr |= S(o)
            else:
                self.vw = V(ops[0])
                srcs = ops[1:]
                for o in srcs: self.vr |= V(o); self.sr |= S(o)
                if base.startswith('v_fmac') or base.startswith('v_pk_fmac') or base.startswith('v_dot2c') or base.startswith('v_writelane'):
                    self.vr |= self.vw
        elif op.startswith('ds_read') or op.startswith('ds_bpermute'):
            self.kind = 'dsread'; self.vw = V(ops[0])
            for o in ops[1:]: self.vr |= V(o)
        elif op.startswith('ds_write'):
            self.kind = 'dswrite'
            for o in ops: self.vr |= V(o)
        elif op.startswith('buffer_load') or op.startswith('global_load'):
            islds = ' lds' in t
            self.kind = 'vmemlds' if islds else 'vmemload'
            if islds:
                self.m0r = True
                for o in ops: self.vr |= V(o); self.sr |= S(o)
            else:
                self.vw = V(ops[0])
                for o in ops[1:]: self.vr |= V(o); self.sr |= S(o)
        elif op.startswith('buffer_store') or op.startswith('global_store'):
            self.kind = 'vmemstore'
            for o in ops: self.vr |= V(o); self.sr |= S(o)
            self.mD = V(ops[0]) if op.startswith('buffer_store') else V(ops[1])
        elif op == 's_nop':
            self.kind = 'nop'; self.nops = int(ops[0], 0) + 1
        elif op.startswith('s_'):
            self.kind = 'salu'
            if ops:
                k, r = regs_of(ops[0])
                nowrite = op.startswith('s_cmp') or op.startswith('s_cbranch') or op.startswith('s_waitcnt') or op.startswith('s_branch') or op in ('s_barrier', 's_endpgm', 's_setprio', 's_sleep')
                if not nowrite:
                    if k == 's': self.sw = set(r)
                    if k == 'm0': self.m0w = True
                    for o in ops[1:]: self.sr |= S(o)
                else:
                    for o in ops: self.sr |= S(o)
        else:
            raise ValueError("unknown op " + text)

def required_gap(p, c):
    need = 0
    isvalu = lambda x: x.kind in ('valu', 'trans', 'permlane', 'readlane')
    if isvalu(p) and c.kind == 'mfma' and (p.vw & c.vr): need = max(need, 2)
    if p.kind == 'mfma':
        P = p.passes
        d_valu = {4: 8, 8: 12}[P]
        d_ab = {4: 8, 8: 12}[P]
        d_cov = {4: 6, 8: 10}[P]
        war_c = {4: 3, 8: 7}[P]
        if c.kind == 'mfma':
            if p.mD & (c.mA | c.mB): need = max(need, d_ab)
            if p.mD & c.mC:
                if not (p.mD == c.mC and p.passes == c.passes): need = max(need, d_cov)
            if (p.mD & c.mD) and not (p.mD == c.mC and p.passes == c.passes): need = max(need, d_cov)
        else:
            if isvalu(c) and (p.mD & (c.vr | c.vw)): need = max(need, d_valu)
            if c.kind in ('dsread', 'dswrite', 'vmemload', 'vmemstore', 'vmemlds') and (p.mD & (c.vr | c.vw)): need = max(need, d_valu)
            if isvalu(c) and (p.mC & c.vw): need = max(need, war_c)
    if p.kind == 'trans' and (isvalu(c) and c.kind != 'trans' or c.kind == 'mfma') and (p.vw & c.vr): need = max(need, 1 if c.kind != 'mfma' else 2)
    if isvalu(p) and c.kind == 'permlane' and (p.vw & c.vr): need = max(need, 2)
    if isvalu(p) and c.kind == 'readlane' and (p.vw & c.vr): need = max(need, 1)
    if isvalu(p) and p.sw:
        if c.kind in ('vmemload', 'vmemstore', 'vmemlds') and (p.sw & c.sr): need = max(need, 5)
        if isvalu(c) and (p.sw & c.sr): need = max(need, 2)
        if c.kind == 'salu' and (p.sw & c.sr): need = max(need, 4)
    if p.kind == 'vmemstore' and len(p.mD) >= 3:
        if isvalu(c) and (p.mD & c.vw): need = max(need, 2)
        if c.kind in ('mfma', 'dsread', 'vmemload') and (p.mD & c.vw): need = max(need, 2)
    if p.m0w and c.m0r: need = max(need, 1)
    return need

def fix_hazards(lines, window=24, verbose=False):
    out = []
    ninserted = 0
    for t in lines:
        c = Ins(t)
        if c.kind == 'label':
            out.append(c); continue
        dist = 0; need_extra = 0
        for p in reversed(out):
            if p.kind == 'label': continue
            g = required_gap(p, c)
            if g > dist: need_extra = max(need_extra, g - dist)
            dist += p.nops
            if dist >= window: break
        while need_extra > 0:
            n = min(need_extra, 16)
            out.append(Ins(f"  s_nop {n-1}"))
            ninserted += n
            need_extra -= n
        out.append(c)
    if verbose: print(f"; hazard nops inserted: {ninserted}")
    return [i.text for i in out]

class WaitTracker:
    def __init__(self, maxn):
        self.q = []; self.maxn = maxn
    def issue(self, tag): self.q.append(tag)
    def need(self, tag):
        idx = [i for i, t in enumerate(self.q) if t == tag]
        if not idx: return None
        last = idx[-1]
        n = len(self.q) - 1 - last
        assert n <= self.maxn, (n, tag)
        self.q = self.q[last + 1:]
        return n
```

```python
KN = "standalone__gqa_softmax__near_ridge_kernel"

HEADER_COMMENTS = """; Kernarg layout for this problem (48 bytes, ptrs only, base s[0:1]):
"""

def wrap(body, grid=(256,1,1), block=(512,1,1), lds=163840, vgpr=256, sgpr=102, accum=256):
    s = HEADER_COMMENTS
    s += f"; @launch grid=({grid[0]},{grid[1]},{grid[2]}) block=({block[0]},{block[1]},{block[2]}) lds={lds}\n"
    s += f""".amdgcn_target "amdgcn-amd-amdhsa--gfx950"
.text
.globl {KN}
.p2align 8
.type {KN},@function
{KN}:
"""
    s += body
    s += f"""
.section .rodata,"a"
.p2align 6
.amdhsa_kernel {KN}
  .amdhsa_next_free_vgpr {vgpr}
  .amdhsa_next_free_sgpr {sgpr}
  .amdhsa_accum_offset {accum}
  .amdhsa_group_segment_fixed_size 0
  .amdhsa_kernarg_size 48
  .amdhsa_user_sgpr_count 2
  .amdhsa_user_sgpr_kernarg_segment_ptr 1
  .amdhsa_system_sgpr_workgroup_id_x 1
.end_amdhsa_kernel
"""
    return s
```

```python
import sys, argparse, struct
from gen_common import *
from asmir import *

C_SCALE = (128 ** -0.5) * 1.4426950408889634
def f2u(x): return struct.unpack('<I', struct.pack('<f', x))[0]

S0 = 0
OB = 64
QB = [128, 160]
FR = 192
NF = 8
KA = 224
VA = 232
VQ = 236
VM = 237; VT = 238; VMC = 239
VS0 = 240; VS1 = 241; VRI = 242
VKD = 243; VVD = 244
VT2 = 245; VT3 = 246; VT4 = 247
SC = 40

class Gen:
    def __init__(self, **o):
        self.o = dict(qnt="", ont="", kvnt="", pd=6, stamps=False, prio=False, pk=False, ntiles=4)
        self.o.update(o)
        self.L = []
        self.vm = WaitTracker(63)
        self.lg = WaitTracker(15)
        self.nstamp = 0
    def a(self, s): self.L.append("  " + s)
    def label(self, s): self.L.append(s + ":")
    def stamp(self):
        if not self.o['stamps']: return
        n = self.nstamp; self.nstamp += 1
        assert 60 + 2*n + 1 < 100
        self.a(f"s_memtime s[{60+2*n}:{61+2*n}]")
        self.a("s_waitcnt lgkmcnt(0)")
        self.lg.q = []
    def vmwait(self, tag):
        n = self.vm.need(tag)
        if n is not None: self.a(f"s_waitcnt vmcnt({n})")
    def lgwait(self, tag):
        n = self.lg.need(tag)
        if n is not None: self.a(f"s_waitcnt lgkmcnt({n})")

    def prologue(self):
        a = self.a; o = self.o
        a("s_cmp_ge_u32 s2, 256")
        a("s_cbranch_scc1 L_end")
        a("s_load_dwordx4 s[4:7], s[0:1], 0")
        a("s_load_dwordx4 s[8:11], s[0:1], 16")
        if o['stamps']:
            a("s_load_dwordx2 s[56:57], s[0:1], 40")
        a("v_lshrrev_b32 v1, 6, v0")
        a("v_and_b32 v0, 63, v0")
        a("v_readfirstlane_b32 s3, v1")
        a("v_and_b32 v2, 31, v0")
        a("v_lshrrev_b32 v3, 5, v0")
        a("v_and_b32 v4, 15, v0")
        a("v_lshrrev_b32 v5, 4, v0")
        a(f"v_lshlrev_b32 v{VQ}, 8, v2")
        a(f"v_lshl_add_u32 v{VQ}, v3, 4, v{VQ}")
        a("s_waitcnt lgkmcnt(0)")
        a("s_mov_b32 s12, s4"); a("s_and_b32 s13, s5, 0xffff"); a("s_mov_b32 s14, 0x4000000"); a("s_mov_b32 s15, 0x20000")
        a("s_mov_b32 s16, s6"); a("s_and_b32 s17, s7, 0xffff"); a("s_mov_b32 s18, 0x1000000"); a("s_mov_b32 s19, 0x20000")
        a("s_mov_b32 s20, s8"); a("s_and_b32 s21, s9, 0xffff"); a("s_mov_b32 s22, 0x1000000"); a("s_mov_b32 s23, 0x20000")
        a("s_mov_b32 s24, s10"); a("s_and_b32 s25, s11, 0xffff"); a("s_mov_b32 s26, 0x4000000"); a("s_mov_b32 s27, 0x20000")
        a("s_lshl_b32 s28, s2, 18")
        a("s_lshl_b32 s29, s3, 13")
        a("s_add_u32 s28, s28, s29")
        a("s_add_u32 s29, s28, 0x10000")
        a("s_add_u32 s30, s28, 0x20000")
        a("s_add_u32 s31, s28, 0x30000")
        self.stamp()
        self.load_q(0)
        a("s_lshl_b32 s34, s3, 2")
        a(f"v_add_u32 v6, s34, v5")
        a(f"v_and_b32 v6, 15, v6")
        a(f"v_xor_b32 v6, v6, v4")
        a(f"v_lshlrev_b32 v6, 4, v6")
        a(f"v_lshl_add_u32 v{VKD}, v5, 8, v6")
        a(f"v_lshlrev_b32 v6, 2, v5")
        a(f"v_xor_b32 v6, v6, v4")
        a(f"v_lshlrev_b32 v6, 4, v6")
        a(f"v_lshl_add_u32 v{VVD}, v5, 8, v6")
        a("s_lshl_b32 s33, s2, 16")
        a("s_lshl_b32 s34, s3, 10")
        a("s_add_u32 s33, s33, s34")
        for j in range(8):
            a(f"s_add_u32 m0, s34, {j*8192}")
            a(f"s_add_u32 s35, s33, {j*8192}")
            a(f"buffer_load_dwordx4 v{VKD}, s[16:19], s35 offen {o['kvnt']} lds"); self.vm.issue("K")
        for j in range(8):
            a(f"s_add_u32 m0, s34, {65536+j*8192}")
            a(f"s_add_u32 s35, s33, {j*8192}")
            a(f"buffer_load_dwordx4 v{VVD}, s[20:23], s35 offen {o['kvnt']} lds"); self.vm.issue("V")
        self.load_q(1)
        a("v_lshlrev_b32 v7, 8, v2")
        for s in range(8):
            a(f"v_or_b32 v6, {2*s}, v3")
            a(f"v_xor_b32 v6, v6, v4")
            a(f"v_lshl_add_u32 v{KA+s}, v6, 4, v7")
        a("v_lshrrev_b32 v6, 2, v4")
        a("v_lshl_add_u32 v7, v3, 2, v6")
        a("v_lshlrev_b32 v7, 8, v7")
        a("v_add_u32 v7, 0x10000, v7")
        a("v_and_b32 v8, 1, v5")
        a("v_lshlrev_b32 v8, 5, v8")
        a("v_add_u32 v7, v7, v8")
        a("v_and_b32 v8, 3, v4")
        a("v_lshlrev_b32 v8, 3, v8")
        a("v_add_u32 v7, v7, v8")
        for dt in range(4):
            a(f"v_xor_b32 v8, {dt}, v6")
            a(f"v_lshl_add_u32 v{VA+dt}, v8, 6, v7")
        a(f"s_mov_b32 s{SC}, {hex(f2u(C_SCALE))}")

    def load_q(self, i):
        buf = QB[i % 2]
        for s in range(8):
            self.a(f"buffer_load_dwordx4 v[{buf+4*s}:{buf+4*s+3}], v{VQ}, s[12:15], s{28+i} offen offset:{32*s} {self.o['qnt']}")
            self.vm.issue(f"Q{i}")

    def kread(self, n):
        t, s = divmod(n, 8)
        slot = FR + 4 * (n % NF)
        self.a(f"ds_read_b128 v[{slot}:{slot+3}], v{KA+s} offset:{t*8192}")
        self.lg.issue(f"K{n}")
    def vread(self, n):
        dt, sp = divmod(n, 16)
        slot = FR + 4 * (n % NF)
        self.a(f"ds_read_b64_tr_b16 v[{slot}:{slot+1}], v{VA+dt} offset:{sp*4096}")
        self.lg.issue(f"V{n}")
        self.a(f"ds_read_b64_tr_b16 v[{slot+2}:{slot+3}], v{VA+dt} offset:{sp*4096+2048}")
        self.lg.issue(f"V{n}")

    def epilogue_ops(self, dt, i):
        ob = OB + 16 * dt
        ops = []
        if self.o['pk']:
            for r in range(0, 16, 2):
                ops.append(f"v_pk_mul_f32 v[{ob+r}:{ob+r+1}], v[{ob+r}:{ob+r+1}], v[{VRI}:{VRI+1}] op_sel_hi:[1,0]")
        else:
            for r in range(16):
                ops.append(f"v_mul_f32 v{ob+r}, v{ob+r}, v{VRI}")
        for k in range(8):
            ops.append(f"v_cvt_pk_bf16_f32 v{ob+k}, v{ob+2*k}, v{ob+2*k+1}")
        for half in range(2):
            b = ob + 4 * half
            ops.append(f"v_permlane32_swap_b32 v{b}, v{b+2}")
            ops.append(f"v_permlane32_swap_b32 v{b+1}, v{b+3}")
        for half in range(2):
            b = ob + 4 * half
            ops.append(("st", f"buffer_store_dwordx4 v[{b}:{b+3}], v{VQ}, s[24:27], s{28+i} offen offset:{64*dt+32*half} {self.o['ont']}", f"O{i}"))
        return ops

    def emit_fill(self, ops):
        for x in ops:
            if isinstance(x, tuple):
                self.a(x[1]); self.vm.issue(x[2])
            else:
                self.a(x)

    def spread(self, ops, ngaps, start):
        res = [[] for _ in range(ngaps)]
        n = ngaps - start
        for k, x in enumerate(ops):
            g = start + (k * n) // len(ops)
            res[g].append(x)
        return res

    def qk(self, i, deferred):
        a = self.a; pd = self.o['pd']
        q = QB[i % 2]
        fill = [[] for _ in range(64)]
        if deferred:
            sp = self.spread(deferred, 8, 2)
            for g in range(8): fill[g] += sp[g]
        for t in range(1, 8):
            ops = []
            b = 16 * (t - 1)
            for k in range(8):
                if t == 1 and k == 0:
                    ops.append(f"v_max_f32 v{VM}, v{b}, v{b+1}")
                else:
                    ops.append(f"v_max3_f32 v{VM}, v{b+2*k}, v{b+2*k+1}, v{VM}")
            sp = self.spread(ops, 8, 4)
            for g in range(8): fill[8*t+g] += sp[g]
        if self.o['prio']: a("s_setprio 1")
        for n in range(64):
            t, s = divmod(n, 8)
            slot = FR + 4 * (n % NF)
            self.lgwait(f"K{n}")
            c = "0" if s == 0 else f"v[{16*t}:{16*t+15}]"
            a(f"v_mfma_f32_32x32x16_bf16 v[{16*t}:{16*t+15}], v[{slot}:{slot+3}], v[{q+4*s}:{q+4*s+3}], {c}")
            if n + pd < 64: self.kread(n + pd)
            self.emit_fill(fill[n])
        if self.o['prio']: a("s_setprio 0")

    def softmax(self, i):
        a = self.a
        b = 112
        for k in range(8):
            a(f"v_max3_f32 v{VM}, v{b+2*k}, v{b+2*k+1}, v{VM}")
        a(f"v_mov_b32 v{VT}, v{VM}")
        a(f"v_mov_b32 v{VS0}, 0")
        a(f"v_mov_b32 v{VS1}, 0")
        a(f"v_permlane32_swap_b32 v{VM}, v{VT}")
        a(f"v_max_f32 v{VM}, v{VM}, v{VT}")
        a(f"v_mul_f32 v{VMC}, s{SC}, v{VM}")
        pd = self.o['pd']
        for g in range(16):
            r = 8 * g
            if self.o['pk']:
                for k in range(0, 8, 2):
                    a(f"v_pk_fma_f32 v[{r+k}:{r+k+1}], v[{r+k}:{r+k+1}], s[{SC}:{SC+1}], v[{VMC}:{VMC+1}] op_sel_hi:[1,0,0] neg_lo:[0,0,1] neg_hi:[0,0,1]")
            else:
                for k in range(8):
                    a(f"v_fma_f32 v{r+k}, v{r+k}, s{SC}, -v{VMC}")
            for k in range(8):
                a(f"v_exp_f32 v{r+k}, v{r+k}")
            if self.o['pk']:
                for k in range(0, 8, 2):
                    a(f"v_pk_add_f32 v[{VS0}:{VS1}], v[{VS0}:{VS1}], v[{r+k}:{r+k+1}]")
            else:
                for k in range(8):
                    sreg = VS0 if k % 2 == 0 else VS1
                    a(f"v_add_f32 v{sreg}, v{sreg}, v{r+k}")
            for k in range(4):
                a(f"v_cvt_pk_bf16_f32 v{r//2+k}, v{r+2*k}, v{r+2*k+1}")
            if g == 14:
                if i == 0:
                    self.vmwait("V"); a("s_barrier")
                for n in range(pd): self.vread(n)
        a(f"v_add_f32 v{VS0}, v{VS0}, v{VS1}")
        a(f"v_mov_b32 v{VT}, v{VS0}")
        a("s_nop 1")
        a(f"v_permlane32_swap_b32 v{VS0}, v{VT}")
        a(f"v_add_f32 v{VS0}, v{VS0}, v{VT}")
        a(f"v_rcp_f32 v{VRI}, v{VS0}")

    def pv(self, i, last):
        a = self.a; pd = self.o['pd']
        fill = [[] for _ in range(64)]
        for dt in range(1, 4):
            ops = self.epilogue_ops(dt - 1, i)
            sp = self.spread(ops, 16, 4)
            for g in range(16): fill[16*dt+g] += sp[g]
        if self.o['prio']: a("s_setprio 1")
        for n in range(64):
            dt, sp_ = divmod(n, 16)
            slot = FR + 4 * (n % NF)
            self.lgwait(f"V{n}")
            ob = OB + 16 * dt
            c = "0" if sp_ == 0 else f"v[{ob}:{ob+15}]"
            a(f"v_mfma_f32_32x32x16_bf16 v[{ob}:{ob+15}], v[{slot}:{slot+3}], v[{4*sp_}:{4*sp_+3}], {c}")
            if n + pd < 64: self.vread(n + pd)
            elif not last and n + pd - 64 < pd: self.kread(n + pd - 64)
            self.emit_fill(fill[n])
        if self.o['prio']: a("s_setprio 0")
        return self.epilogue_ops(3, i)

    def build(self):
        a = self.a; o = self.o
        self.prologue()
        deferred = None
        nt = o['ntiles']
        for i in range(nt):
            self.vmwait(f"Q{i}")
            if i == 0:
                self.vmwait("K"); a("s_barrier")
                for n in range(o['pd']): self.kread(n)
            self.stamp()
            self.qk(i, deferred)
            if i + 2 < nt: self.load_q(i + 2)
            self.stamp()
            self.softmax(i)
            self.stamp()
            deferred = self.pv(i, i == nt - 1)
        self.stamp()
        self.emit_fill(deferred)
        if o['stamps']:
            a("s_waitcnt vmcnt(0)")
            self.stamp()
            a("s_lshl_b32 s50, s2, 3"); a("s_add_u32 s50, s50, s3"); a("s_lshl_b32 s50, s50, 8")
            a("s_mov_b32 s52, s56"); a("s_and_b32 s53, s57, 0xffff"); a("s_mov_b32 s54, 0x10000000"); a("s_mov_b32 s55, 0x20000")
            a("v_mov_b32 v1, 0")
            for n in range(self.nstamp):
                a(f"v_mov_b32 v2, s{60+2*n}")
                a(f"v_mov_b32 v3, s{61+2*n}")
                a(f"buffer_store_dwordx2 v[2:3], v1, s[52:55], s50 offen offset:{8*n}")
                a("s_nop 1")
        self.label("L_end")
        a("s_endpgm")
        lines = fix_hazards(self.L, verbose=True)
        return wrap("\n".join(lines) + "\n")

if __name__ == "__main__":
    ap = argparse.ArgumentParser()
    ap.add_argument("out")
    ap.add_argument("--opt", action="append", default=[])
    args = ap.parse_args()
    o = {}
    for kv in args.opt:
        k, v = kv.split("=", 1)
        if v in ("True", "False"): v = (v == "True")
        else:
            try: v = int(v)
            except: pass
        o[k] = v
    open(args.out, "w").write(Gen(**o).build())
```
